```python
import torch

def _softmax(x, axis=-1):
    return torch.softmax(x, dim=axis)
def _gelu(x):
    return torch.nn.functional.gelu(x, approximate="tanh")
def _silu(x):
    return torch.nn.functional.silu(x)
def _sigmoid(x):
    return torch.sigmoid(x)
def _layernorm(x, axis=-1, eps=1e-5):
    m = x.mean(dim=axis, keepdim=True)
    v = x.var(dim=axis, keepdim=True, unbiased=False)
    return (x - m) / torch.sqrt(v + eps)
def _scatter_add(tgt, idx, src, axis=0):
    return tgt.clone().index_add_(axis, idx, src)
def _segment_sum(src, seg, n):
    out = torch.zeros((n,) + src.shape[1:], dtype=src.dtype)
    return out.index_add_(0, seg, src)
def _pad(x, pw):
    flat = tuple(v for pair in reversed(pw) for v in pair)
    return torch.nn.functional.pad(x, flat)

kernel_name = 'concat_heads__gqa_block_cached__mha_block_cached__near_ridge'

def setup_inputs():

    _w = (lambda a: (lambda t: t.to(torch.bfloat16) if t.is_floating_point() else t)(torch.as_tensor(a)))
    def _A_setup():
        B, Sq, D = 8, 80, 512
        Hq, Hkv, Sk, Dh = 32, 8, 2048, 128
        assert Hq % Hkv == 0, (Hq, Hkv)
        return {
            "x": _w((lambda *s: torch.randn(*s, dtype=torch.bfloat16) * 0.8)(B, Sq, D)),
            "k_cache": _w((lambda *s: torch.randn(*s, dtype=torch.bfloat16) * 0.8)(B, Hkv, Sk, Dh)),
            "v_cache": _w((lambda *s: torch.randn(*s, dtype=torch.bfloat16) * 0.05)(B, Hkv, Sk, Dh)),
            "wq": _w((lambda *s: torch.randn(*s, dtype=torch.bfloat16) * 0.8)(D, Hq * Dh) * (D ** -0.5)),
            "wo": _w((lambda *s: torch.randn(*s, dtype=torch.bfloat16) * 0.05)(Hq * Dh, D) * ((Hq * Dh) ** -0.5)),
        }
    _A_in = _A_setup()

    def _B_setup():
        B, Sq, D = 8, 80, 512
        H, Sk, Dh = 32, 2048, 128
        return {
            "x": _w((lambda *s: torch.randn(*s, dtype=torch.bfloat16) * 0.8)(B, Sq, D)),
            "k_cache": _w((lambda *s: torch.randn(*s, dtype=torch.bfloat16) * 0.8)(B, H, Sk, Dh)),
            "v_cache": _w((lambda *s: torch.randn(*s, dtype=torch.bfloat16) * 0.05)(B, H, Sk, Dh)),
            "wq": _w((lambda *s: torch.randn(*s, dtype=torch.bfloat16) * 0.8)(D, H * Dh) * (D ** -0.5)),
            "wo": _w((lambda *s: torch.randn(*s, dtype=torch.bfloat16) * 0.05)(H * Dh, D) * ((H * Dh) ** -0.5)),
        }
    _B_in = _B_setup()

    return {
        "A_x": _A_in["x"],
        "A_k_cache": _A_in["k_cache"],
        "A_v_cache": _A_in["v_cache"],
        "A_wq": _A_in["wq"],
        "A_wo": _A_in["wo"],
        "B_x": _B_in["x"],
        "B_k_cache": _B_in["k_cache"],
        "B_v_cache": _B_in["v_cache"],
        "B_wq": _B_in["wq"],
        "B_wo": _B_in["wo"],
    }

def reference(A_x, A_k_cache, A_v_cache, A_wq, A_wo, B_x, B_k_cache, B_v_cache, B_wq, B_wo):
    def _A_ref(x, k_cache, v_cache, wq, wo):
        B, Sq, D = x.shape
        Hq, Dh = 32, 128
        Hkv = k_cache.shape[1]
        rep = Hq // Hkv
        q = (lambda x, *d: x.permute(*d))((x @ wq).reshape(B, Sq, Hq, Dh), 0, 2, 1, 3)
        k = (lambda x, n, axis: torch.repeat_interleave(x, n, dim=axis))(k_cache, rep, axis=1)
        v = (lambda x, n, axis: torch.repeat_interleave(x, n, dim=axis))(v_cache, rep, axis=1)
        scores = torch.einsum("bhqd,bhkd->bhqk", q, k) * (Dh ** -0.5)
        p = _softmax(scores, axis=-1)
        o = torch.einsum("bhqk,bhkd->bhqd", p, v)
        return (lambda x, *d: x.permute(*d))(o, 0, 2, 1, 3).reshape(B, Sq, Hq * Dh) @ wo

    def _B_ref(x, k_cache, v_cache, wq, wo):
        B, Sq, D = x.shape
        H, Dh = 32, 128
        q = (lambda x, *d: x.permute(*d))((x @ wq).reshape(B, Sq, H, Dh), 0, 2, 1, 3)
        scores = torch.einsum("bhqd,bhkd->bhqk", q, k_cache) * (Dh ** -0.5)
        p = _softmax(scores, axis=-1)
        o = torch.einsum("bhqk,bhkd->bhqd", p, v_cache)
        return (lambda x, *d: x.permute(*d))(o, 0, 2, 1, 3).reshape(B, Sq, H * Dh) @ wo

    a = _A_ref(A_x, A_k_cache, A_v_cache, A_wq, A_wo)
    b = _B_ref(B_x, B_k_cache, B_v_cache, B_wq, B_wo)
    return torch.concatenate([a, b], axis=-1)
```

```python
import re

def expand(op):
    op = op.strip()
    m = re.fullmatch(r'(-|abs\()?([vas])\[(\d+):(\d+)\]\)?', op)
    if m:
        return [f"{m.group(2)}{i}" for i in range(int(m.group(3)), int(m.group(4)) + 1)]
    m = re.fullmatch(r'-?(?:abs\()?([vas])(\d+)\)?', op)
    if m:
        return [f"{m.group(1)}{m.group(2)}"]
    if op in ('vcc', 'exec', 'm0', 'scc'):
        return [op]
    if op in ('vcc_lo', 'vcc_hi'):
        return ['vcc']
    if op in ('exec_lo', 'exec_hi'):
        return ['exec']
    return []

TRANS = ('v_exp_f32', 'v_log_f32', 'v_rcp_f32', 'v_rsq_f32', 'v_sqrt_f32', 'v_sin_f32', 'v_cos_f32', 'v_rcp_iflag_f32')
MFMA_PASSES = {'v_mfma_f32_16x16x32_bf16': 4, 'v_mfma_f32_32x32x16_bf16': 8}

class Ins:
    __slots__ = ('text', 'mn', 'ops', 'mods', 'kind', 'reads', 'writes', 'lds_r', 'lds_w', 'comment', 'cread', 'width', 'tag')
    def __init__(self, text, lds_r=None, lds_w=None, tag=None):
        self.text = text
        self.lds_r = lds_r
        self.lds_w = lds_w
        self.tag = tag
        self.cread = []
        self.width = 0
        t = text.split(';')[0].strip()
        if t.endswith(':'):
            self.kind = 'label'; self.mn = t; self.ops = []; self.reads = []; self.writes = []; return
        if t.startswith('.') or t == '':
            self.kind = 'dir'; self.mn = t; self.ops = []; self.reads = []; self.writes = []; return
        parts = t.split(None, 1)
        mn = parts[0]; self.mn = mn
        rest = parts[1] if len(parts) > 1 else ''
        ops = []; cur = ''; depth = 0
        for ch in rest:
            if ch in '[(': depth += 1
            if ch in '])': depth -= 1
            if ch == ',' and depth == 0:
                ops.append(cur.strip()); cur = ''
            else:
                cur += ch
        if cur.strip(): ops.append(cur.strip())
        mods = []
        if ops:
            last = ops[-1].split()
            ops[-1] = last[0]; mods = last[1:]
        self.ops = ops; self.mods = mods
        R = []; W = []
        base = re.sub(r'_e(32|64)$', '', mn)
        if base in MFMA_PASSES:
            self.kind = 'mfma'
            W = expand(ops[0]); R = expand(ops[1]) + expand(ops[2]); self.cread = expand(ops[3])
        elif base.startswith('ds_read') or base.startswith('ds_bpermute') or base.startswith('ds_swizzle'):
            self.kind = 'dsr'; W = expand(ops[0])
            for o in ops[1:]: R += expand(o)
        elif base.startswith('ds_write') or base.startswith('ds_add') or base.startswith('ds_or'):
            self.kind = 'dsw'
            for o in ops: R += expand(o)
        elif base.startswith('buffer_load'):
            if 'lds' in mods:
                self.kind = 'dma'
                for o in ops: R += expand(o)
                R.append('m0')
            else:
                self.kind = 'vld'; W = expand(ops[0])
                for o in ops[1:]: R += expand(o)
        elif base.startswith('global_load_lds'):
            self.kind = 'dma'
            for o in ops: R += expand(o)
            R.append('m0')
        elif base.startswith('global_load'):
            self.kind = 'vld'; W = expand(ops[0])
            for o in ops[1:]: R += expand(o)
        elif base.startswith('buffer_store') or base.startswith('global_store'):
            self.kind = 'vst'
            for o in ops: R += expand(o)
            self.width = {'x4': 4, 'x3': 3, 'x2': 2}.get(base[-2:], 1)
            if base.startswith('buffer_store'): self.cread = expand(ops[0])
            else: self.cread = expand(ops[1])
        elif base.startswith('global_atomic') or base.startswith('buffer_atomic'):
            ret = 'sc0' in mods
            self.kind = 'vld' if ret else 'vst'
            if ret:
                W = expand(ops[0])
                for o in ops[1:]: R += expand(o)
            else:
                for o in ops: R += expand(o)
        elif base in ('buffer_wbl2', 'buffer_inv'):
            self.kind = 'vst'
        elif base.startswith('s_load') or base in ('s_memrealtime', 's_memtime'):
            self.kind = 'smem'; W = expand(ops[0])
            for o in ops[1:]: R += expand(o)
        elif base == 's_waitcnt':
            self.kind = 'wait'
        elif base == 's_nop':
            self.kind = 'nop'
        elif base == 's_barrier':
            self.kind = 'barrier'
        elif base in ('s_endpgm', 's_sleep', 's_setprio'):
            self.kind = 'salu'
        elif base.startswith('s_cbranch') or base == 's_branch':
            self.kind = 'branch'
            if 'scc' in base: R = ['scc']
            elif 'vcc' in base: R = ['vcc']
            elif 'exec' in base: R = ['exec']
        elif base.startswith('s_cmp') or base.startswith('s_bitcmp'):
            self.kind = 'salu'; W = ['scc']
            for o in ops: R += expand(o)
        elif base.startswith('s_'):
            self.kind = 'salu'
            W = expand(ops[0]) if ops else []
            for o in ops[1:]: R += expand(o)
            if base in ('s_addk_i32', 's_mulk_i32'): R += expand(ops[0])
            if base.startswith('s_cselect') or base in ('s_addc_u32', 's_subb_u32'): R.append('scc')
            if base in ('s_add_u32', 's_addc_u32', 's_sub_u32', 's_subb_u32', 's_add_i32', 's_sub_i32', 's_lshl_b32', 's_lshr_b32',
                        's_and_b32', 's_or_b32', 's_xor_b32', 's_and_b64', 's_or_b64', 's_min_u32', 's_max_u32', 's_addk_i32', 's_lshl_b64',
                        's_lshr_b64', 's_ashr_i32', 's_andn2_b64', 's_xor_b64', 's_bfe_u32', 's_not_b32', 's_min_i32', 's_max_i32'): W = W + ['scc']
            if 'saveexec' in base: W = W + ['exec', 'scc']; R.append('exec')
            if base.startswith('s_getreg'): R = []
        elif base.startswith('v_'):
            self.kind = 'trans' if base in TRANS else 'valu'
            if base.startswith('v_cmp'):
                W = expand(ops[0])
                for o in ops[1:]: R += expand(o)
            elif base.startswith('v_permlane') and 'swap' in base:
                W = expand(ops[0]) + expand(ops[1]); R = list(W)
            elif base in ('v_add_co_u32', 'v_sub_co_u32'):
                W = expand(ops[0]) + expand(ops[1])
                for o in ops[2:]: R += expand(o)
            elif base in ('v_addc_co_u32', 'v_subb_co_u32'):
                W = expand(ops[0]) + expand(ops[1])
                for o in ops[2:]: R += expand(o)
            else:
                W = expand(ops[0])
                for o in ops[1:]: R += expand(o)
                if base in ('v_fmac_f32', 'v_pk_fmac_f32', 'v_dot2c_f32_bf16', 'v_writelane_b32'): R += expand(ops[0])
                if base == 'v_cndmask_b32' and len(ops) == 3: R.append('vcc')
        else:
            raise ValueError("unknown instruction: " + text)
        self.reads = R; self.writes = W

    def __repr__(self):
        return self.text

class Prog:
    def __init__(self):
        self.ins = []
    def __call__(self, text, **kw):
        for line in text.strip('\n').split('\n'):
            line = line.strip()
            if not line or line.startswith(';'):
                continue
            self.ins.append(Ins(line, **kw))
        return self
    def add(self, i):
        if isinstance(i, Ins): self.ins.append(i)
        elif isinstance(i, (list, tuple)):
            for x in i: self.add(x)
        elif isinstance(i, Prog): self.ins.extend(i.ins)
        else: self(i)
        return self
    def text(self):
        out = []
        for i in self.ins:
            if i.kind in ('label', 'dir'): out.append(i.text)
            else: out.append('  ' + i.text)
        return '\n'.join(out) + '\n'

class HazardError(Exception):
    pass

def parse_wait(i):
    vm = lg = None
    for m in re.finditer(r'(vmcnt|lgkmcnt|expcnt)\((\d+)\)', i.text):
        if m.group(1) == 'vmcnt': vm = int(m.group(2))
        if m.group(1) == 'lgkmcnt': lg = int(m.group(2))
    return vm, lg

def verify(seq, name='', fix=False, init_vm=None):
    errs = []
    need = {}
    pos = 0
    lastw = {}
    lastc = {}
    laststore = {}
    vmq = list(init_vm or [])
    lgq = []
    m0w = -100
    def req(idx, ins, prod_pos, n, why):
        have = pos - prod_pos - 1
        if have < n:
            if fix:
                need[idx] = max(need.get(idx, 0), n - have)
            else:
                errs.append((idx, f"{name}: [{why}] need {n} wait states, have {have}: {ins.text}"))
            return n - have
        return 0
    for idx, ins in enumerate(seq):
        if ins.kind in ('label', 'dir'):
            continue
        extra = 0
        if ins.kind == 'wait':
            vm, lg = parse_wait(ins)
            if vm is not None:
                while len(vmq) > vm: vmq.pop(0)
            if lg is not None:
                if any(e.get('smem') for e in lgq):
                    if lg == 0: lgq.clear()
                else:
                    while len(lgq) > lg: lgq.pop(0)
            pos += 1
            continue
        if ins.kind == 'nop':
            pos += int(ins.ops[0], 0) + 1
            continue
        allr = ins.reads + ins.cread
        for r in set(allr + ins.writes):
            for e in vmq:
                if r in e['regs']:
                    errs.append((idx, f"{name}: [vmcnt] {r} pending from '{e['text']}': {ins.text}"))
            for e in lgq:
                if r in e['regs']:
                    if ins.kind == 'dsr' and r in ins.writes and r not in ins.reads: continue
                    errs.append((idx, f"{name}: [lgkmcnt] {r} pending from '{e['text']}': {ins.text}"))
        if ins.lds_r is not None:
            for e in vmq:
                if e.get('lds') == ins.lds_r:
                    errs.append((idx, f"{name}: [lds RAW] region {ins.lds_r} DMA pending: {ins.text}"))
        if ins.kind == 'dma' and ins.lds_w is not None:
            for e in lgq:
                if e.get('lds_r') == ins.lds_w:
                    errs.append((idx, f"{name}: [lds WAR] region {ins.lds_w} has pending ds_read: {ins.text}"))
        isvalu = ins.kind in ('valu', 'trans')
        if ins.kind == 'mfma':
            dregs = expand(ins.ops[0]); cregs = ins.cread
            for r in ins.reads:
                if r in lastw:
                    p, k, ps, regs = lastw[r]
                    if k in ('valu', 'trans'): extra = max(extra, req(idx, ins, p, 2, 'valu->mfma AB'))
                    if k == 'mfma': extra = max(extra, req(idx, ins, p, {4: 8, 8: 12}[ps], 'mfma->mfma AB'))
            for r in cregs:
                if r in lastw:
                    p, k, ps, regs = lastw[r]
                    if k in ('valu', 'trans'): extra = max(extra, req(idx, ins, p, 2, 'valu->mfma C'))
                    if k == 'mfma':
                        if tuple(regs) != tuple(cregs) or ps != MFMA_PASSES[re.sub(r'_e(32|64)$', '', ins.mn)]:
                            extra = max(extra, req(idx, ins, p, {4: 6, 8: 10}[ps], 'mfma->mfma C overlap'))
            for r in dregs:
                if r in lastw and r not in cregs:
                    p, k, ps, regs = lastw[r]
                    if k == 'mfma': extra = max(extra, req(idx, ins, p, {4: 6, 8: 10}[ps], 'mfma->mfma WAW'))
        else:
            for r in set(ins.reads + ins.cread):
                if r in lastw:
                    p, k, ps, regs = lastw[r]
                    if k == 'mfma' and (isvalu or ins.kind in ('dsw', 'dsr', 'vst', 'vld', 'dma')):
                        extra = max(extra, req(idx, ins, p, {4: 8, 8: 12}[ps], 'mfma->read'))
                    if k == 'trans' and ins.kind == 'valu': extra = max(extra, req(idx, ins, p, 1, 'trans->valu'))
                    if k in ('valu', 'trans'):
                        if r[0] == 's' or r == 'vcc':
                            if ins.kind in ('vld', 'vst', 'dma'): extra = max(extra, req(idx, ins, p, 5, 'valu sgpr->vmem'))
                            elif isvalu:
                                n = 4 if ins.mn.startswith(('v_readlane', 'v_writelane')) else 2
                                extra = max(extra, req(idx, ins, p, n, 'valu sgpr->valu'))
                            elif ins.kind in ('salu', 'branch'):
                                extra = max(extra, req(idx, ins, p, 1, 'valu sgpr->salu (pad)'))
                        elif r[0] == 'v':
                            if ins.mn.startswith(('v_readfirstlane', 'v_readlane')): extra = max(extra, req(idx, ins, p, 1, 'valu->readlane'))
                            if ins.mn.startswith('v_permlane'): extra = max(extra, req(idx, ins, p, 2, 'valu->permlane'))
                            if 'dpp' in ins.text or 'row_' in ins.text or 'quad_perm' in ins.text: extra = max(extra, req(idx, ins, p, 2, 'valu->dpp'))
                        elif r == 'exec' and isvalu:
                            pass
            for r in ins.writes:
                if r in lastw:
                    p, k, ps, regs = lastw[r]
                    if k == 'mfma' and (isvalu or ins.kind in ('dsr', 'vld')):
                        extra = max(extra, req(idx, ins, p, {4: 8, 8: 12}[ps], 'mfma->WAW'))
                if r in lastc and isvalu:
                    p, ps = lastc[r]
                    extra = max(extra, req(idx, ins, p, {4: 3, 8: 7}[ps], 'mfma C WAR'))
                if r in laststore and isvalu:
                    extra = max(extra, req(idx, ins, laststore[r], 2, 'wide store WAR'))
                elif r in laststore and ins.kind in ('dsr', 'vld', 'mfma'):
                    extra = max(extra, req(idx, ins, laststore[r], 1, 'wide store WAR'))
            if ins.kind == 'dma':
                extra = max(extra, req(idx, ins, m0w, 1, 'm0->dma'))
        if fix: pos += extra
        if ins.kind == 'mfma':
            ps = MFMA_PASSES[re.sub(r'_e(32|64)$', '', ins.mn)]
            for r in ins.writes: lastw[r] = (pos, 'mfma', ps, list(ins.writes))
            for r in ins.cread: lastc[r] = (pos, ps)
        else:
            for r in ins.writes:
                lastw[r] = (pos, ins.kind, 0, list(ins.writes))
            if 'm0' in ins.writes and ins.kind == 'salu': m0w = pos
        if ins.kind == 'vst' and ins.width >= 3:
            for r in ins.cread: laststore[r] = pos
        if ins.kind in ('vld', 'vst', 'dma'):
            vmq.append(dict(regs=set(ins.writes) if ins.kind == 'vld' else set(), lds=ins.lds_w if ins.kind == 'dma' else None, text=ins.text))
            if len(vmq) > 63: errs.append((idx, f"{name}: vmcnt overflow (>63 outstanding; hw stalls) at {ins.text}"))
        if ins.kind in ('dsr', 'dsw'):
            lgq.append(dict(regs=set(ins.writes), lds_r=ins.lds_r, text=ins.text))
        if ins.kind == 'smem':
            lgq.append(dict(regs=set(ins.writes), smem=True, text=ins.text))
        pos += 1
    if fix: return errs, need
    return errs

def insert_nops(seq_lists, name=''):
    pass

def check(seq, name, allow=()):
    errs = verify(seq, name)
    errs = [e for e in errs if not any(a in e[1] for a in allow)]
    if errs:
        for e in errs[:40]: print("HAZARD", e)
        raise HazardError(f"{len(errs)} hazards in {name}")

def autonop(prog, name=''):
    errs, need = verify(prog.ins, name, fix=True)
    out = Prog()
    for idx, ins in enumerate(prog.ins):
        n = need.get(idx, 0)
        while n > 0:
            k = min(n, 16)
            out.ins.append(Ins(f"s_nop {k-1}"))
            n -= k
        out.ins.append(ins)
    return out
```

```python
from asmlib import *

NS = 5
SLOT = 8192
RING = NS * SLOT
SCALE = 0.08838834764831845 * 1.4426950408889634

import struct
def f2u(x): return struct.unpack('<I', struct.pack('<f', x))[0]

S = dict(
    WG=2,
    PA=8,
    PB=16,
    WS=24,
    WAVE=26, KH=27, BR=28, B=29, H=30,
    RK=32,
    RV=36,
    RW=40,
    RX=44,
    RO=48,
    RING=52,
    KS=53,
    VS=54,
    DK=55, DV=56,
    KG=57, VG=58,
    T0=59, T1=60, T2=61, T3=62,
    CNT=63,
    SELLO=64, SELHI=65,
    SCL=66,
    CP=68, CM=69,
    STG=70,
    PRING=71,
    T4=72, T5=73,
    RK0=76,
    RV0=80,
)
def s(n, k=0): return f"s{S[n]+k}"
def sr(n, cnt): return f"s[{S[n]}:{S[n]+cnt-1}]"

V_LANE = 1
V_L16 = 2
V_KA = 4
V_VA = 8
V_DK = 16
V_DV = 20
V_T = 22
V_S = 32
V_P = 72
V_NM = 92
V_L = 112
V_K = 132
V_V = 164
V_ONE = 196
V_END = 200
V_QT = 96
V_QR = 128
A_O = 0
A_Q = 160

def vq(base, n=4): return f"v[{base}:{base+n-1}]"
def aq(base, n=4): return f"a[{base}:{base+n-1}]"
def acc(db, q): return A_O + (db * 5 + q) * 4
MF = "v_mfma_f32_16x16x32_bf16"

def dma_tile(kind, srd, soff, dest_expr_sgpr, slotname, tmp):
    out = []
    base = V_DK if kind == 'K' else V_DV
    mod = 4 if kind == 'K' else 2
    out.append(Ins(f"s_mov_b32 m0, {dest_expr_sgpr}"))
    out.append(Ins(f"s_add_u32 {tmp}, {soff}, 4096"))
    for i in range(4):
        off = f" offset:{i*1024}" if i else ""
        out.append(Ins(f"buffer_load_dwordx4 v{base + (i % mod)}, {srd}, {soff} offen{off} nt lds", lds_w=slotname))
    out.append(Ins(f"s_add_u32 m0, m0, 4096"))
    out.append(Ins(f"s_nop 0"))
    for i in range(4, 8):
        off = f" offset:{(i-4)*1024}" if i > 4 else ""
        out.append(Ins(f"buffer_load_dwordx4 v{base + (i % mod)}, {srd}, {tmp} offen{off} nt lds", lds_w=slotname))
    return out

def qk_mfmas(q, first_c):
    out = []
    for kb in range(2):
        d = V_S + q * 8 + kb * 4
        for st in range(4):
            c = first_c if st == 0 else vq(d)
            out.append(Ins(f"{MF} {vq(d)}, {vq(V_K + (kb*4+st)*4)}, {aq(A_Q + (q*4+st)*4)}, {c}"))
    return out

def pv_mfmas(q, zero=False):
    out = []
    for db in range(8):
        c = "0" if zero else aq(acc(db, q))
        out.append(Ins(f"{MF} {aq(acc(db,q))}, {vq(V_V + db*4)}, {vq(V_P + q*4)}, {c}"))
    c = "0" if zero else vq(V_L + q*4)
    out.append(Ins(f"{MF} {vq(V_L + q*4)}, {vq(V_ONE)}, {vq(V_P + q*4)}, {c}"))
    return out

def sm_ops(q):
    b = V_S + q * 8; p = V_P + q * 4
    e = [Ins(f"v_exp_f32 v{b+i}, v{b+i}") for i in range(8)]
    c = [Ins(f"v_cvt_pk_bf16_f32 v{p+i}, v{b+2*i}, v{b+2*i+1}") for i in range(4)]
    return [e[0], e[1], e[2], c[0], e[3], e[4], c[1], e[5], e[6], c[2], e[7], None, c[3]]

def k_reads(slotname):
    out = []
    for kb in range(2):
        for st in range(4):
            off = f" offset:{kb*4096}" if kb else ""
            out.append(Ins(f"ds_read_b128 {vq(V_K + (kb*4+st)*4)}, v{V_KA+st}{off}", lds_r=slotname))
    return out

def v_reads(db, slotname):
    return [Ins(f"ds_read_b64_tr_b16 v[{V_V+db*4}:{V_V+db*4+1}], v{V_VA+db}", lds_r=slotname),
            Ins(f"ds_read_b64_tr_b16 v[{V_V+db*4+2}:{V_V+db*4+3}], v{V_VA+db} offset:4096", lds_r=slotname)]

def interleave(mfmas, fillers):
    out = list(fillers.get(-1, []))
    for i, m in enumerate(mfmas):
        out.append(m)
        out.extend(fillers.get(i, []))
    return out

def spread(ops, gaps, per=None):
    ops = [o for o in ops if o is not None]
    res = {g: [] for g in gaps}
    n = len(ops); m = len(gaps)
    for i, o in enumerate(ops):
        res[gaps[min(m - 1, i * m // n)]].append(o)
    return res

def merge(*ds):
    r = {}
    for d in ds:
        for k, v in d.items():
            r.setdefault(k, []).extend(v)
    return r

def slot_advance(cur, delta):
    return [Ins(f"s_add_u32 {s('T2')}, {s(cur)}, {2*SLOT}"),
            Ins(f"s_cmp_ge_u32 {s('T2')}, {RING}"),
            Ins(f"s_cselect_b32 {s(delta)}, {s('CM')}, {s('CP')}"),
            Ins(f"s_add_u32 {s(cur)}, {s(cur)}, {s(delta)}")]

def step(t_first=False, names=None):
    n = names
    P = []
    negm = lambda q: vq(V_NM + q*4)
    qk0 = qk_mfmas(0, negm(0))
    dmaV = [Ins(f"s_add_u32 {s('T0')}, {s('RING')}, {s('KS')}")] + dma_tile('V', sr('RV', 4), s('VG'), s('T0'), n['Kcur'], s('T1')) + \
           [Ins(f"s_add_u32 {s('VG')}, {s('VG')}, {SLOT}")]
    if not t_first:
        m = pv_mfmas(3) + qk0
        f = spread(sm_ops(4), list(range(0, 9)))
        f = merge(f, {8: [Ins("s_waitcnt lgkmcnt(0)")]})
        f = merge(f, spread(dmaV, list(range(9, 17))))
    else:
        m = qk0
        f = spread(dmaV, list(range(0, 8)))
    P += interleave(m, f)
    qk1 = qk_mfmas(1, negm(1))
    if not t_first:
        m = pv_mfmas(4) + qk1
        f = {-1: [Ins("s_waitcnt vmcnt(32)")]}
        for db in range(8): f = merge(f, {db: v_reads(db, n['Vcur'])})
        f = merge(f, spread(sm_ops(0), list(range(3, 17))))
    else:
        m = qk1
        f = {-1: [Ins("s_waitcnt vmcnt(32)")]}
        for db in range(8): f = merge(f, {db: v_reads(db, n['Vcur'])})
        f = merge(f, {7: [o for o in sm_ops(0) if o is not None][:0]})
    P += interleave(m, f)
    if t_first:
        ops = sm_ops(0)
        P += [o if o is not None else Ins("s_nop 0") for o in ops]
    m = qk_mfmas(2, negm(2)) + pv_mfmas(0, zero=t_first)
    vadd = [Ins(f"v_add_u32 v{V_VA+db}, {s('DV')}, v{V_VA+db}") for db in range(8)]
    f = spread(sm_ops(1), list(range(2, 15)))
    f = merge(f, {7: [Ins("s_waitcnt lgkmcnt(0)")]})
    f = merge(f, spread(vadd, list(range(8, 16))))
    P += interleave(m, f)
    dmaK = [Ins(f"s_add_u32 {s('T0')}, {s('RING')}, {s('VS')}")] + dma_tile('K', sr('RK', 4), s('KG'), s('T0'), n['Vcur'], s('T1')) + \
           [Ins(f"s_add_u32 {s('KG')}, {s('KG')}, {SLOT}")] + slot_advance('VS', 'DV')
    m = qk_mfmas(3, negm(3)) + pv_mfmas(1, zero=t_first)
    f = spread(sm_ops(2), list(range(0, 13)))
    f = merge(f, spread(dmaK, list(range(1, 17))))
    P += interleave(m, f)
    kadv = slot_advance('KS', 'DK')
    kadd = [Ins(f"v_add_u32 v{V_KA+st}, {s('DK')}, v{V_KA+st}") for st in range(4)]
    m = qk_mfmas(4, negm(4)) + pv_mfmas(2, zero=t_first)
    f = spread(sm_ops(3), list(range(0, 13)))
    f = merge(f, {0: kadv, 2: kadd[:2], 3: kadd[2:]})
    kr = k_reads(n['Knext'])
    f = merge(f, {7: [Ins("s_waitcnt vmcnt(32)")] + kr[:2], 8: kr[2:4], 9: kr[4:6], 10: kr[6:8]})
    P += interleave(m, f)
    return P

def tail():
    P = []
    m = pv_mfmas(3)
    f = spread(sm_ops(4), list(range(0, 9)))
    P += interleave(m, f)
    P.append(Ins("s_nop 1"))
    P += pv_mfmas(4)
    return P

def gen_k1(name="attn_kernel"):
    p = Prog()
    L = lambda x: f"{name}_{x}"
    p(f"{name}:")
    p(f"""
    s_cmp_ge_u32 s2, 256
    s_cbranch_scc1 {L('end')}
    s_load_dwordx8 s[8:15], s[0:1], 0
    s_load_dwordx8 s[16:23], s[0:1], 40
    s_load_dwordx2 s[24:25], s[0:1], 96
    v_lshrrev_b32 v3, 6, v0
    v_and_b32 v{V_LANE}, 63, v0
    v_readfirstlane_b32 {s('WAVE')}, v3
    v_lshlrev_b32 v{V_L16}, 4, v{V_LANE}
    s_and_b32 {s('KH')}, {s('WAVE')}, 1
    s_lshr_b32 {s('BR')}, {s('WAVE')}, 1
    s_and_b32 {s('T0')}, s2, 7
    s_lshr_b32 {s('T1')}, s2, 3
    s_lshr_b32 {s('B')}, {s('T1')}, 2
    s_and_b32 {s('T1')}, {s('T1')}, 3
    s_lshl_b32 {s('H')}, {s('T0')}, 2
    s_add_u32 {s('H')}, {s('H')}, {s('T1')}
    s_mul_i32 {s('RING')}, {s('WAVE')}, {RING}
    s_xor_b32 {s('T2')}, {s('WAVE')}, 1
    s_mul_i32 {s('PRING')}, {s('T2')}, {RING}
    s_mul_i32 {s('STG')}, {s('BR')}, {2*RING}
    s_add_u32 {s('STG')}, {s('STG')}, {2*SLOT}
    s_mov_b32 {s('SELLO')}, 0x05040100
    s_mov_b32 {s('SELHI')}, 0x07060302
    s_mov_b32 {s('SCL')}, {hex(f2u(SCALE))}
    s_mov_b32 {s('SCL',1)}, {hex(f2u(SCALE))}
    s_mov_b32 {s('CP')}, {2*SLOT}
    s_mov_b32 {s('CM')}, {hex((-(NS-2)*SLOT) & 0xffffffff)}
    s_waitcnt lgkmcnt(0)
    """)
    p(f"s_cmp_eq_u32 {s('BR')}, 0")
    for i in range(8): p(f"s_cselect_b32 s{8+i}, s{8+i}, s{16+i}")
    p(f"""
    s_lshr_b32 {s('T0')}, {s('H')}, 2
    s_lshl_b32 {s('T1')}, {s('B')}, 3
    s_add_u32 {s('T0')}, {s('T0')}, {s('T1')}
    s_lshl_b32 {s('T1')}, {s('B')}, 5
    s_add_u32 {s('T1')}, {s('T1')}, {s('H')}
    s_cmp_eq_u32 {s('BR')}, 0
    s_cselect_b32 {s('T0')}, {s('T0')}, {s('T1')}
    s_lshl_b32 {s('T0')}, {s('T0')}, 19
    s_lshl_b32 {s('T1')}, {s('KH')}, 18
    s_add_u32 {s('T1')}, {s('T1')}, {s('T0')}
    s_add_u32 {s('RK')}, s10, {s('T1')}
    s_addc_u32 {s('RK',1)}, s11, 0
    s_mov_b32 {s('RK',2)}, 0x40000
    s_mov_b32 {s('RK',3)}, 0x20000
    s_add_u32 {s('RV')}, s12, {s('T1')}
    s_addc_u32 {s('RV',1)}, s13, 0
    s_mov_b32 {s('RV',2)}, 0x40000
    s_mov_b32 {s('RV',3)}, 0x20000
    s_add_u32 {s('RK0')}, s10, {s('T0')}
    s_addc_u32 {s('RK0',1)}, s11, 0
    s_mov_b32 {s('RK0',2)}, 0x40000
    s_mov_b32 {s('RK0',3)}, 0x20000
    s_add_u32 {s('RV0')}, s12, {s('T0')}
    s_addc_u32 {s('RV0',1)}, s13, 0
    s_mov_b32 {s('RV0',2)}, 0x40000
    s_mov_b32 {s('RV0',3)}, 0x20000
    s_lshl_b32 {s('T0')}, {s('H')}, 8
    s_add_u32 {s('RW')}, s14, {s('T0')}
    s_addc_u32 {s('RW',1)}, s15, 0
    s_sub_u32 {s('RW',2)}, 0x400000, {s('T0')}
    s_mov_b32 {s('RW',3)}, 0x20000
    s_mul_i32 {s('T0')}, {s('B')}, 81920
    s_add_u32 {s('RX')}, s8, {s('T0')}
    s_addc_u32 {s('RX',1)}, s9, 0
    s_mov_b32 {s('RX',2)}, 81920
    s_mov_b32 {s('RX',3)}, 0x20000
    s_lshl_b32 {s('T0')}, {s('BR')}, 3
    s_add_u32 {s('T0')}, {s('T0')}, {s('B')}
    s_lshl_b32 {s('T0')}, {s('T0')}, 5
    s_add_u32 {s('T0')}, {s('T0')}, {s('H')}
    s_mul_i32 {s('T0')}, {s('T0')}, 20480
    s_add_u32 {s('RO')}, s24, {s('T0')}
    s_addc_u32 {s('RO',1)}, s25, 0
    s_mov_b32 {s('RO',2)}, 20480
    s_mov_b32 {s('RO',3)}, 0x20000
    """)
    p(f"""
    v_lshrrev_b32 v22, 4, v{V_LANE}
    v_and_b32 v23, 15, v{V_LANE}
    v_lshlrev_b32 v24, 8, v22
    v_lshlrev_b32 v25, 2, v22
    v_xor_b32 v25, v25, v23
    """)
    for i in range(4):
        p(f"""
        v_xor_b32 v26, {i}, v25
        v_lshlrev_b32 v26, 4, v26
        v_add_u32 v{V_DK+i}, v24, v26
        """)
    for i in range(2):
        p(f"""
        v_lshlrev_b32 v26, 1, v22
        v_add_u32 v26, {8*i}, v26
        v_xor_b32 v26, v26, v23
        v_lshlrev_b32 v26, 4, v26
        v_add_u32 v{V_DV+i}, v24, v26
        """)
    p(f"""
    v_and_b32 v26, 3, v23
    v_lshlrev_b32 v26, 2, v26
    v_lshrrev_b32 v27, 2, v23
    v_or_b32 v26, v26, v27
    v_lshlrev_b32 v27, 2, v22
    v_xor_b32 v26, v26, v27
    v_lshlrev_b32 v28, 8, v23
    v_add_u32 v28, {s('RING')}, v28
    """)
    for st in range(4):
        p(f"""
        v_xor_b32 v27, {st}, v26
        v_lshlrev_b32 v27, 4, v27
        v_add_u32 v{V_KA+st}, v28, v27
        """)
    p(f"""
    v_lshrrev_b32 v26, 2, v23
    v_lshlrev_b32 v27, 2, v22
    v_add_u32 v26, v26, v27
    v_and_b32 v27, 7, v26
    v_lshlrev_b32 v27, 1, v27
    v_bfe_u32 v28, v23, 1, 1
    v_xor_b32 v27, v27, v28
    s_lshl_b32 {s('T0')}, {s('KH')}, 3
    v_xor_b32 v27, {s('T0')}, v27
    v_lshlrev_b32 v26, 8, v26
    v_and_b32 v28, 1, v23
    v_lshlrev_b32 v28, 3, v28
    v_add_u32 v26, v26, v28
    s_add_u32 {s('T1')}, {s('RING')}, {SLOT}
    v_add_u32 v26, {s('T1')}, v26
    """)
    for db in range(8):
        p(f"""
        v_xor_b32 v28, {2*db}, v27
        v_lshlrev_b32 v28, 4, v28
        v_add_u32 v{V_VA+db}, v26, v28
        """)
    p(f"""
    s_cmp_eq_u32 {s('KH')}, 0
    s_cbranch_scc1 {L('qproj')}
    """)
    pro_common = list(p.ins)
    pf = Prog()
    tiles = []
    pf(f"s_mov_b32 {s('T3')}, 0")
    pf.add(dma_tile('K', sr('RK0', 4), s('T3'), s('PRING'), 'p0', s('T1')))
    pf(f"s_add_u32 {s('T0')}, {s('PRING')}, {SLOT}")
    pf.add(dma_tile('V', sr('RV0', 4), s('T3'), s('T0'), 'p1', s('T1')))
    for n in range(NS):
        kind = 'K' if n % 2 == 0 else 'V'
        pf(f"s_add_u32 {s('T0')}, {s('RING')}, {n*SLOT}")
        pf(f"s_mov_b32 {s('T3')}, {(n//2)*SLOT}")
        pf.add(dma_tile(kind, sr('RK' if kind == 'K' else 'RV', 4), s('T3'), s('T0'), f'slot{n}', s('T1')))
    for i in range(160): pf(f"v_accvgpr_write_b32 a{A_O+i}, 0")
    pf(f"s_waitcnt vmcnt(0)")
    pf(f"s_branch {L('join')}")
    p.add(pf)
    qp = Prog()
    qp(f"{L('qproj')}:")
    qp(f"""
    v_lshlrev_b32 v24, 16, v22
    v_lshlrev_b32 v26, 4, v23
    v_add_u32 v24, v24, v26
    v_lshlrev_b32 v25, 10, v23
    v_lshlrev_b32 v26, 4, v22
    v_add_u32 v25, v25, v26
    s_mov_b32 {s('T0')}, 0
    s_mov_b32 {s('T3')}, 0
    """)
    def qloads(pbuf):
        o = []
        for j in range(8):
            o.append(Ins(f"buffer_load_dwordx4 {vq(V_QR + pbuf*32 + j*4)}, v24, {sr('RW',4)}, {s('T0')} offen"))
            o.append(Ins(f"s_add_u32 {s('T0')}, {s('T0')}, 8192"))
        o.append(Ins(f"s_add_u32 {s('T0')}, {s('T0')}, {24*8192}"))
        for q in range(5):
            o.append(Ins(f"s_add_u32 {s('T1')}, {s('T3')}, {q*16384}"))
            o.append(Ins(f"buffer_load_dwordx4 {aq(A_Q + pbuf*20 + q*4)}, v25, {sr('RX',4)}, {s('T1')} offen"))
        o.append(Ins(f"s_add_u32 {s('T3')}, {s('T3')}, 64"))
        return o
    for pb in range(4): qp.add(qloads(pb))
    for i in range(160): qp(f"v_accvgpr_write_b32 a{A_O+i}, 0")
    qp(f"s_mov_b32 {s('CNT')}, 4")
    qp(f"{L('qloop')}:")
    qbody = []
    for pb in range(4):
        qbody.append(Ins("s_waitcnt vmcnt(39)"))
        def perms(i):
            sel = s('SELLO') if i % 2 == 0 else s('SELHI')
            return [Ins(f"v_perm_b32 v{V_QT+i*4+u}, v{V_QR+pb*32+(2*u+1)*4+(i>>1)}, v{V_QR+pb*32+(2*u)*4+(i>>1)}, {sel}") for u in range(4)]
        qbody += perms(0) + [Ins("s_nop 1")]
        for i in range(8):
            m = [Ins(f"{MF} {aq(acc(i,q))}, {vq(V_QT+i*4)}, {aq(A_Q+pb*20+q*4)}, {aq(acc(i,q))}") for q in range(5)]
            f = spread(perms(i+1), [0, 1]) if i < 7 else {}
            qbody += interleave(m, f)
        qbody += qloads(pb)
    qp.add(qbody)
    qp(f"""
    s_sub_u32 {s('CNT')}, {s('CNT')}, 1
    s_cmp_lg_u32 {s('CNT')}, 0
    s_cbranch_scc1 {L('qloop')}
    s_waitcnt vmcnt(0)
    v_add_u32 v26, {s('STG')}, v{V_L16}
    """)
    for q in range(5):
        for st in range(4):
            tb = 32 + ((q*4+st) % 2) * 16
            for u in range(4):
                qp(f"v_accvgpr_read_b32 v{tb+2*u}, a{acc(2*u,q)+st}")
                qp(f"v_accvgpr_read_b32 v{tb+2*u+1}, a{acc(2*u+1,q)+st}")
            for u in range(4):
                qp(f"v_pk_mul_f32 v[{tb+2*u}:{tb+2*u+1}], v[{tb+2*u}:{tb+2*u+1}], {sr('SCL',2)}")
            for u in range(4):
                qp(f"v_cvt_pk_bf16_f32 v{tb+8+u}, v{tb+2*u}, v{tb+2*u+1}")
            qp(f"ds_write_b128 v26, {vq(tb+8)} offset:{(q*4+st)*1024}")
    for i in range(160): qp(f"v_accvgpr_write_b32 a{A_O+i}, 0")
    qp("s_waitcnt lgkmcnt(0)")
    p.add(qp)
    jn = Prog()
    jn(f"{L('join')}:")
    jn("s_barrier")
    jn(f"v_add_u32 v26, {s('STG')}, v{V_L16}")
    for n in range(20): jn(f"ds_read_b128 {aq(A_Q+n*4)}, v26 offset:{n*1024}")
    for i in range(4): jn(f"v_mov_b32 v{V_ONE+i}, 0x3f803f80")
    for i in range(20): jn(f"v_mov_b32 v{V_L+i}, 0")
    jn(f"""
    s_waitcnt lgkmcnt(0)
    s_barrier
    s_mov_b32 {s('KS')}, 0
    s_mov_b32 {s('VS')}, {SLOT}
    s_mov_b32 {s('KG')}, {3*SLOT}
    s_mov_b32 {s('VG')}, {2*SLOT}
    s_cmp_eq_u32 {s('KH')}, 0
    s_cbranch_scc0 {L('filled')}
    """)
    fill = Prog()
    for n in range(2, NS):
        kind = 'K' if n % 2 == 0 else 'V'
        fill(f"s_add_u32 {s('T0')}, {s('RING')}, {n*SLOT}")
        fill(f"s_mov_b32 {s('T3')}, {(n//2)*SLOT}")
        fill.add(dma_tile(kind, sr('RK' if kind == 'K' else 'RV', 4), s('T3'), s('T0'), f'slot{n}', s('T1')))
    post = Prog()
    post(f"{L('filled')}:")
    post.add(k_reads('slot0'))
    post("s_waitcnt lgkmcnt(0)")
    for q in range(5): post.add(qk_mfmas(q, "0"))
    post("s_nop 7")
    post(f"""
    v_xor_b32 v22, 16, v{V_LANE}
    v_lshlrev_b32 v22, 2, v22
    v_xor_b32 v23, 32, v{V_LANE}
    v_lshlrev_b32 v23, 2, v23
    """)
    for q in range(5):
        b = V_S + q*8
        post(f"""
        v_max3_f32 v{b}, v{b}, v{b+1}, v{b+2}
        v_max3_f32 v{b+3}, v{b+3}, v{b+4}, v{b+5}
        v_max3_f32 v{b}, v{b}, v{b+6}, v{b+7}
        v_max_f32 v{b}, v{b}, v{b+3}
        """)
    for q in range(5): post(f"ds_bpermute_b32 v{V_S+q*8+1}, v22, v{V_S+q*8}")
    post("s_waitcnt lgkmcnt(0)")
    for q in range(5): post(f"v_max_f32 v{V_S+q*8}, v{V_S+q*8}, v{V_S+q*8+1}")
    for q in range(5): post(f"ds_bpermute_b32 v{V_S+q*8+1}, v23, v{V_S+q*8}")
    post("s_waitcnt lgkmcnt(0)")
    for q in range(5):
        post(f"v_max_f32 v{V_S+q*8}, v{V_S+q*8}, v{V_S+q*8+1}")
        for r in range(4): post(f"v_sub_f32 v{V_NM+q*4+r}, 0, v{V_S+q*8}")
    post("s_nop 1")
    def names(t): return dict(Kcur=f"slot{(2*t)%NS}", Vcur=f"slot{(2*t+1)%NS}", Knext=f"slot{(2*t+2)%NS}")
    post.add(step(True, names(0)))
    post(f"s_mov_b32 {s('CNT')}, 31")
    body = Prog()
    body(f"{L('loop')}:")
    body.add(step(False, names(1)))
    body(f"""
    s_sub_u32 {s('CNT')}, {s('CNT')}, 1
    s_cmp_lg_u32 {s('CNT')}, 0
    s_cbranch_scc1 {L('loop')}
    """)
    tl = Prog()
    tl.add(tail())
    tl("s_waitcnt vmcnt(0)")
    tl("s_nop 7")
    tl(f"v_add_u32 v26, {s('RING')}, v{V_L16}")
    for x in range(4):
        for q in range(5):
            tl(f"ds_write_b128 v26, {aq(acc(4+x,q))} offset:{(x*5+q)*1024}")
    tl(f"v_lshlrev_b32 v27, 2, v{V_LANE}")
    tl(f"v_add_u32 v28, {s('RING')}, v27")
    for q in range(5):
        tl(f"ds_write_b32 v28, v{V_NM+q*4} offset:{20480+q*256}")
        tl(f"ds_write_b32 v28, v{V_L+q*4} offset:{20480+1280+q*256}")
    tl(f"""
    v_add_u32 v26, {s('PRING')}, v{V_L16}
    v_add_u32 v28, {s('PRING')}, v27
    s_waitcnt lgkmcnt(0)
    s_barrier
    """)
    for q in range(5):
        tl(f"ds_read_b32 v{32+q}, v28 offset:{20480+q*256}")
        tl(f"ds_read_b32 v{40+q}, v28 offset:{20480+1280+q*256}")
    for n in range(20): tl(f"ds_read_b128 {vq(132+n*4)}, v26 offset:{n*1024}")
    tl("s_waitcnt lgkmcnt(15)")
    tl("s_waitcnt lgkmcnt(0)")
    for q in range(5):
        tl(f"""
        v_min_f32 v{48+q}, v{V_NM+q*4}, v{32+q}
        v_sub_f32 v{56+q}, v{48+q}, v{V_NM+q*4}
        v_sub_f32 v{64+q}, v{48+q}, v{32+q}
        v_exp_f32 v{56+q}, v{56+q}
        v_exp_f32 v{64+q}, v{64+q}
        s_nop 0
        v_mul_f32 v{72+q}, v{56+q}, v{V_L+q*4}
        v_fmac_f32 v{72+q}, v{64+q}, v{40+q}
        v_rcp_f32 v{72+q}, v{72+q}
        s_nop 0
        v_mul_f32 v{56+q}, v{56+q}, v{72+q}
        v_mul_f32 v{64+q}, v{64+q}, v{72+q}
        """)
    for dp in range(2):
        for q in range(5):
            tb = 80 + ((dp*5+q) % 2) * 12
            for h2 in range(2):
                db = 2*dp + h2
                for r in range(4):
                    tl(f"v_accvgpr_read_b32 v{tb+h2*4+r}, a{acc(db,q)+r}")
            for h2 in range(2):
                db = 2*dp + h2
                for r in range(4):
                    tl(f"v_mul_f32 v{tb+h2*4+r}, v{56+q}, v{tb+h2*4+r}")
                    tl(f"v_fmac_f32 v{tb+h2*4+r}, v{64+q}, v{132+(db*5+q)*4+r}")
            for u in range(4):
                tl(f"v_cvt_pk_bf16_f32 v{tb+8+u}, v{tb+2*u}, v{tb+2*u+1}")
            tl(f"s_lshl_b32 {s('T0')}, {s('KH')}, 1")
            tl(f"s_xor_b32 {s('T0')}, {s('T0')}, {dp}")
            tl(f"s_mul_i32 {s('T0')}, {s('T0')}, 5120")
            tl(f"s_add_u32 {s('T0')}, {s('T0')}, {q*1024}")
            tl(f"buffer_store_dwordx4 {vq(tb+8)}, v{V_L16}, {sr('RO',4)}, {s('T0')} offen")
    tl(f"{L('end')}:")
    tl("s_endpgm")
    def chk(seq, nm, allow=()):
        check(seq, nm, allow)
    tail_ins = tl.ins
    seq_q = pro_common + qp.ins[:]
    b1 = Prog(); b1.add(step(False, names(1))); b2 = Prog(); b2.add(step(False, names(2))); b3 = Prog(); b3.add(step(False, names(3)))
    chk(pro_common + qp.ins + jn.ins + fill.ins + post.ins + b1.ins + b2.ins + b3.ins + tail_ins, 'path-q', allow=('vmcnt overflow',))
    chk(pro_common + pf.ins + jn.ins + post.ins + b1.ins + b2.ins + tail_ins, 'path-pf', allow=('vmcnt overflow',))
    chk(qbody + qbody, 'qloop', allow=('[vmcnt]',))
    p.add(jn); p.add(fill); p.add(post); p.add(body); p.add(tl)
    kd = f"""
.amdhsa_kernel {name}
  .amdhsa_next_free_vgpr 512
  .amdhsa_next_free_sgpr 96
  .amdhsa_accum_offset 256
  .amdhsa_group_segment_fixed_size 0
  .amdhsa_kernarg_size 104
  .amdhsa_user_sgpr_count 2
  .amdhsa_user_sgpr_kernarg_segment_ptr 1
  .amdhsa_system_sgpr_workgroup_id_x 1
  .amdhsa_float_denorm_mode_32 3
.end_amdhsa_kernel
"""
    return p, kd

if __name__ == '__main__':
    p, kd = gen_k1()
    print(len(p.ins), "instructions")
```

```python
from asmlib import *
from k1 import vq, aq, MF, interleave, spread, merge

def gen_k2(name="oproj_kernel"):
    p = Prog()
    L = lambda x: f"{name}_{x}"
    NSL = 4
    p(f"{name}:")
    p(f"""
    s_cmp_ge_u32 s2, 256
    s_cbranch_scc1 {L('end')}
    s_load_dwordx2 s[8:9], s[0:1], 32
    s_load_dwordx2 s[10:11], s[0:1], 72
    s_load_dwordx2 s[12:13], s[0:1], 80
    s_load_dwordx2 s[14:15], s[0:1], 96
    v_lshrrev_b32 v3, 6, v0
    v_and_b32 v1, 63, v0
    v_readfirstlane_b32 s28, v3
    v_lshlrev_b32 v2, 4, v1
    s_and_b32 s29, s2, 7
    s_lshr_b32 s30, s2, 3
    s_lshr_b32 s31, s30, 4
    s_and_b32 s30, s30, 15
    s_waitcnt lgkmcnt(0)
    s_cmp_eq_u32 s31, 0
    s_cselect_b32 s8, s8, s10
    s_cselect_b32 s9, s9, s11
    s_lshl_b32 s32, s30, 6
    s_lshl_b32 s33, s28, 20
    s_add_u32 s33, s33, s32
    s_add_u32 s16, s8, s33
    s_addc_u32 s17, s9, 0
    s_sub_u32 s18, 0x400000, s33
    s_mov_b32 s19, 0x20000
    s_lshl_b32 s33, s31, 3
    s_add_u32 s33, s33, s29
    s_lshl_b32 s33, s33, 5
    s_lshl_b32 s34, s28, 3
    s_add_u32 s33, s33, s34
    s_mul_i32 s33, s33, 20480
    s_add_u32 s20, s14, s33
    s_addc_u32 s21, s15, 0
    s_mov_b32 s22, {8*20480}
    s_mov_b32 s23, 0x20000
    s_mul_i32 s33, s29, {80*2048}
    s_lshl_b32 s34, s31, 10
    s_add_u32 s33, s33, s34
    s_add_u32 s33, s33, s32
    s_add_u32 s24, s12, s33
    s_addc_u32 s25, s13, 0
    s_sub_u32 s26, {8*80*2048}, s33
    s_mov_b32 s27, 0x20000
    s_mul_i32 s35, s28, {NSL*8192}
    """)
    p(f"""
    v_lshrrev_b32 v5, 2, v1
    v_lshlrev_b32 v5, 10, v5
    v_and_b32 v6, 3, v1
    v_bfe_u32 v7, v1, 4, 1
    v_lshlrev_b32 v7, 1, v7
    v_xor_b32 v6, v6, v7
    v_lshlrev_b32 v6, 4, v6
    v_add_u32 v4, v5, v6
    """)
    p(f"""
    v_lshrrev_b32 v5, 4, v1
    v_and_b32 v6, 15, v1
    v_lshrrev_b32 v10, 2, v6
    v_lshlrev_b32 v11, 2, v5
    v_add_u32 v10, v10, v11
    v_lshlrev_b32 v10, 6, v10
    v_and_b32 v11, 1, v6
    v_lshlrev_b32 v11, 3, v11
    v_add_u32 v10, v10, v11
    v_add_u32 v10, s35, v10
    v_bfe_u32 v11, v6, 1, 1
    v_xor_b32 v11, v11, v7
    v_lshlrev_b32 v12, 4, v11
    v_add_u32 v8, v10, v12
    v_xor_b32 v11, 2, v11
    v_lshlrev_b32 v12, 4, v11
    v_add_u32 v9, v10, v12
    """)
    ACC = 16
    WF = 56
    OF = 96
    for i in range(40): p(f"v_mov_b32 v{ACC+i}, 0")
    def issue(h):
        o = []
        sl = h % NSL
        for i in range(8):
            o.append(Ins(f"s_add_u32 m0, s35, {sl*8192 + i*1024}"))
            o.append(Ins(f"s_mov_b32 s36, {(h*128 + i*16)*1024}"))
            o.append(Ins(f"buffer_load_dwordx4 v4, s[16:19], s36 offen lds", lds_w=f"w{sl}"))
        return o
    def issue_o(h):
        o = []
        for n in range(20):
            o.append(Ins(f"s_mov_b32 s37, {h*20480 + n*1024}"))
            o.append(Ins(f"buffer_load_dwordx4 {vq(OF + (h%2)*80 + n*4)}, v2, s[20:23], s37 offen"))
        return o
    p.add(issue(0)); p.add(issue_o(0)); p.add(issue(1)); p.add(issue_o(1))
    for h in range(8):
        p(f"s_waitcnt vmcnt({28 if h < 7 else 0})")
        sl = h % NSL
        for ks in range(4):
            for nb in range(2):
                for hf in range(2):
                    d = WF + (ks*2+nb)*4 + hf*2
                    p(f"ds_read_b64_tr_b16 v[{d}:{d+1}], v{8+nb} offset:{sl*8192 + ks*2048 + hf*1024}", lds_r=f"w{sl}")
        p("s_waitcnt lgkmcnt(0)")
        for ks in range(4):
            for nb in range(2):
                for q in range(5):
                    a = ACC + (nb*5+q)*4
                    p(f"{MF} {vq(a)}, {vq(WF+(ks*2+nb)*4)}, {vq(OF+(h%2)*80+(ks*5+q)*4)}, {vq(a)}")
        if h + 2 < 8:
            p.add(issue(h+2)); p.add(issue_o(h+2))
    p("s_nop 7")
    p("s_barrier")
    p(f"""
    s_mul_i32 s36, s28, 10240
    v_add_u32 v10, s36, v2
    """)
    for n in range(10): p(f"ds_write_b128 v10, {vq(ACC+n*4)} offset:{n*1024}")
    p("s_waitcnt lgkmcnt(0)")
    p("s_barrier")
    p(f"""
    v_and_b32 v6, 15, v1
    v_lshlrev_b32 v6, 11, v6
    v_lshrrev_b32 v5, 4, v1
    v_lshlrev_b32 v5, 3, v5
    v_add_u32 v6, v6, v5
    s_mov_b32 s38, s28
    """)
    p(f"{L('red')}:")
    p(f"""
    s_lshl_b32 s36, s38, 10
    v_add_u32 v10, s36, v2
    ds_read_b128 v[56:59], v10
    ds_read_b128 v[60:63], v10 offset:10240
    ds_read_b128 v[64:67], v10 offset:20480
    ds_read_b128 v[68:71], v10 offset:30720
    s_cmp_ge_u32 s38, 5
    s_cselect_b32 s39, 1, 0
    s_mul_i32 s40, s39, 5
    s_sub_u32 s40, s38, s40
    s_lshl_b32 s40, s40, 15
    s_lshl_b32 s39, s39, 5
    s_add_u32 s40, s40, s39
    s_waitcnt lgkmcnt(0)
    """)
    for r in range(4):
        p(f"v_add_f32 v{56+r}, v{56+r}, v{60+r}")
        p(f"v_add_f32 v{64+r}, v{64+r}, v{68+r}")
    for r in range(4): p(f"v_add_f32 v{56+r}, v{56+r}, v{64+r}")
    p(f"""
    v_cvt_pk_bf16_f32 v72, v56, v57
    v_cvt_pk_bf16_f32 v73, v58, v59
    buffer_store_dwordx2 v[72:73], v6, s[24:27], s40 offen
    s_add_u32 s38, s38, 4
    s_cmp_lt_u32 s38, 10
    s_cbranch_scc1 {L('red')}
    """)
    p(f"{L('end')}:")
    p("s_endpgm")
    check(p.ins, 'k2')
    kd = f"""
.amdhsa_kernel {name}
  .amdhsa_next_free_vgpr 256
  .amdhsa_next_free_sgpr 64
  .amdhsa_accum_offset 256
  .amdhsa_group_segment_fixed_size 0
  .amdhsa_kernarg_size 104
  .amdhsa_user_sgpr_count 2
  .amdhsa_user_sgpr_kernarg_segment_ptr 1
  .amdhsa_system_sgpr_workgroup_id_x 1
  .amdhsa_float_denorm_mode_32 3
.end_amdhsa_kernel
"""
    return p, kd

if __name__ == '__main__':
    p, kd = gen_k2()
    print(len(p.ins))
```
